```python
import torch

def _softmax(x, axis=-1):
    return torch.softmax(x, dim=axis)

def _gelu(x):
    return torch.nn.functional.gelu(x, approximate='tanh')

def _silu(x):
    return torch.nn.functional.silu(x)

def _sigmoid(x):
    return torch.sigmoid(x)

def _layernorm(x, axis=-1, eps=1e-05):
    m = x.mean(dim=axis, keepdim=True)
    v = x.var(dim=axis, keepdim=True, unbiased=False)
    return (x - m) / torch.sqrt(v + eps)

def _scatter_add(tgt, idx, src, axis=0):
    return tgt.clone().index_add_(axis, idx, src)

def _segment_sum(src, seg, n):
    out = torch.zeros((n,) + src.shape[1:], dtype=src.dtype)
    return out.index_add_(0, seg, src)

def _pad(x, pw):
    flat = tuple((v for pair in reversed(pw) for v in pair))
    return torch.nn.functional.pad(x, flat)
kernel_name = 'adaLN_cond__gqa_block_cached__geglu_ffn__decode'

def setup_inputs():

    _w = lambda a: (lambda t: t.to(torch.bfloat16) if t.is_floating_point() else t)(torch.as_tensor(a))

    def _A_setup():
        B, Sq, D = (8, 1, 576)
        Hq, Hkv, Sk, Dh = (32, 16, 8192, 128)
        assert Hq % Hkv == 0, (Hq, Hkv)
        return {'x': _w((lambda *s: torch.randn(*s, dtype=torch.bfloat16) * 0.1)(B, Sq, D)), 'k_cache': _w((lambda *s: torch.randn(*s, dtype=torch.bfloat16) * 0.8)(B, Hkv, Sk, Dh)), 'v_cache': _w((lambda *s: torch.randn(*s, dtype=torch.bfloat16) * 0.8)(B, Hkv, Sk, Dh)), 'wq': _w((lambda *s: torch.randn(*s, dtype=torch.bfloat16) * 0.8)(D, Hq * Dh) * D ** (-0.5)), 'wo': _w((lambda *s: torch.randn(*s, dtype=torch.bfloat16) * 0.8)(Hq * Dh, D) * (Hq * Dh) ** (-0.5))}
    _A_in = _A_setup()

    def _B_setup():
        B, S, D, F = (8, 1, 576, 4608)
        return {'x': _w((lambda *s: torch.randn(*s, dtype=torch.bfloat16) * 0.1)(B, S, D)), 'w_gate': _w((lambda *s: torch.randn(*s, dtype=torch.bfloat16) * 0.1)(D, F)), 'w_up': _w((lambda *s: torch.randn(*s, dtype=torch.bfloat16) * 0.1)(D, F)), 'w_down': _w((lambda *s: torch.randn(*s, dtype=torch.bfloat16) * 0.1)(F, D))}
    _B_in = _B_setup()
    return {'A_x': _A_in['x'], 'A_k_cache': _A_in['k_cache'], 'A_v_cache': _A_in['v_cache'], 'A_wq': _A_in['wq'], 'A_wo': _A_in['wo'], 'B_x': _B_in['x'], 'B_w_gate': _B_in['w_gate'], 'B_w_up': _B_in['w_up'], 'B_w_down': _B_in['w_down'], 'c': _w((lambda *s: torch.randn(*s, dtype=torch.bfloat16) * 0.4)(8, 576) * 8.0), 'w_mod': _w((lambda *s: torch.randn(*s, dtype=torch.bfloat16) * 0.4)(576, 6 * 576) * 576 ** (-0.5) * 8.0)}

def reference(A_x, A_k_cache, A_v_cache, A_wq, A_wo, B_x, B_w_gate, B_w_up, B_w_down, c, w_mod):

    def _A_ref(x, k_cache, v_cache, wq, wo):
        B, Sq, D = x.shape
        Hq, Dh = (32, 128)
        Hkv = k_cache.shape[1]
        rep = Hq // Hkv
        q = (lambda x, *d: x.permute(*d))((x @ wq).reshape(B, Sq, Hq, Dh), 0, 2, 1, 3)
        k = (lambda x, n, axis: torch.repeat_interleave(x, n, dim=axis))(k_cache, rep, axis=1)
        v = (lambda x, n, axis: torch.repeat_interleave(x, n, dim=axis))(v_cache, rep, axis=1)
        scores = torch.einsum('bhqd,bhkd->bhqk', q, k) * Dh ** (-0.5)
        p = _softmax(scores, axis=-1)
        o = torch.einsum('bhqk,bhkd->bhqd', p, v)
        return (lambda x, *d: x.permute(*d))(o, 0, 2, 1, 3).reshape(B, Sq, Hq * Dh) @ wo

    def _B_ref(x, w_gate, w_up, w_down):
        return _gelu(x @ w_gate) * (x @ w_up) @ w_down
    x = A_x
    mod = (_silu(c) @ w_mod).reshape(c.shape[0], 6, 1, -1)
    sa, ca, ga, sb, cb, gb = (mod[:, 0].clone(), mod[:, 1].clone(), mod[:, 2].clone(), mod[:, 3].clone(), mod[:, 4].clone(), mod[:, 5].clone())
    h = _layernorm(x, axis=-1) * (1 + ca) + sa
    x = x + ga * _A_ref(h, A_k_cache, A_v_cache, A_wq, A_wo)
    h = _layernorm(x, axis=-1) * (1 + cb) + sb
    x = x + gb * _B_ref(h, B_w_gate, B_w_up, B_w_down)
    return x
```

```python
import sys
L=[]
def e(s): L.append(s)
WS_MOD=0; WS_Q=0x20000; WS_PART=0x40000; WS_ML=0xC0000; WS_O=0xD0000; WS_WOP=0xE0000; WS_X1=0x110000; WS_ACT=0x120000; WS_DP=0x140000
WSZ=0x200000
P_X,P_K,P_V,P_WQ,P_WO,P_BX,P_WG,P_WU,P_WD,P_C,P_WM,P_OUT,P_DBG,P_WS=[8*i for i in range(14)]
LOG2E=1.4426950408889634
import struct
def f2u(f): return "0x%08x"%struct.unpack("<I",struct.pack("<f",f))[0]
def srd(d,ptr,size):
    e(f"s_load_dwordx2 s[{d}:{d+1}], s[0:1], {ptr}")
    e(f"s_mov_b32 s{d+2}, {size}")
    e(f"s_mov_b32 s{d+3}, 0x00020000")
def head(name,nwg):
    e(f".globl {name}"); e(".p2align 8"); e(f".type {name},@function"); e(f"{name}:")
    e(f"s_cmp_ge_u32 s2, {nwg}"); e(f"s_cbranch_scc1 {name}_end")
def tail(name):
    e(f"{name}_end:"); e("s_endpgm")
def allred32(v,op="v_add_f32"):
    for r in (8,4,2,1):
        e("s_nop 1"); e(f"{op}_dpp v{v}, v{v}, v{v} row_ror:{r} row_mask:0xf bank_mask:0xf")
    e(f"ds_swizzle_b32 v250, v{v} offset:0x401F"); e("s_waitcnt lgkmcnt(0)"); e(f"{op} v{v}, v250, v{v}")
def bfround(v,t):
    e(f"v_cvt_pk_bf16_f32 v{t}, v{v}, v{v}"); e(f"v_lshlrev_b32 v{v}, 16, v{t}")
def bj():
    e("v_lshrrev_b32 v200, 5, v0"); e("v_and_b32 v201, 31, v0")
def ln_mod(xb, sidx, cidx):
    e(f"v_mov_b32 v202, 0")
    for i in range(18): e(f"v_add_f32 v202, v202, v{xb+i}")
    allred32(202); e(f"v_mul_f32 v202, {f2u(1/576)}, v202")
    e("v_mov_b32 v203, 0")
    for i in range(18):
        e(f"v_sub_f32 v{xb+i}, v{xb+i}, v202"); e(f"v_fmac_f32 v203, v{xb+i}, v{xb+i}")
    allred32(203); e(f"v_mul_f32 v203, {f2u(1/576)}, v203"); e(f"v_add_f32 v203, {f2u(1e-5)}, v203"); e("v_rsq_f32 v203, v203")
    e("v_mul_u32_u24 v204, 0x3600, v200"); e("v_lshl_add_u32 v204, v201, 3, v204")
    for i in range(9):
        e(f"buffer_load_dwordx2 v[{100+2*i}:{101+2*i}], v204, s[24:27], 0 offen offset:{i*256}") if False else None
    e(f"v_add_u32 v205, {sidx*2304}, v204"); e(f"v_add_u32 v206, {cidx*2304}, v204")
    for i in range(9):
        e(f"buffer_load_dwordx2 v[{100+2*i}:{101+2*i}], v205, s[24:27], 0 offen offset:{i*256}")
        e(f"buffer_load_dwordx2 v[{120+2*i}:{121+2*i}], v206, s[24:27], 0 offen offset:{i*256}")
    e("s_waitcnt vmcnt(0)")
    e("v_lshlrev_b32 v207, 5, v201"); e("v_lshl_add_u32 v207, v200, 2, v207")
    for i in range(9):
        for k in range(2):
            x=xb+2*i+k
            e(f"v_mul_f32 v{x}, v{x}, v203"); e(f"v_add_f32 v{120+2*i+k}, 1.0, v{120+2*i+k}")
            e(f"v_fma_f32 v{x}, v{x}, v{120+2*i+k}, v{100+2*i+k}")
        e(f"v_cvt_pk_bf16_f32 v208, v{xb+2*i}, v{xb+2*i+1}")
        e(f"ds_write_b32 v207, v208 offset:{i*1024}")
    e("s_waitcnt lgkmcnt(0)"); e("s_barrier")
def act_from_ws(wsoff,rowlen,rc_sg):
    bj()
    e(f"v_mul_u32_u24 v204, {rowlen*2}, v200"); e("v_lshl_add_u32 v204, v201, 4, v204")
    e(f"s_lshl_b32 s28, s{rc_sg}, 10"); e(f"s_add_u32 s28, s28, {wsoff}")
    e("buffer_load_dwordx4 v[100:103], v204, s[24:27], s28 offen")
    e("buffer_load_dwordx4 v[104:107], v204, s[24:27], s28 offen offset:512")
    e("v_lshlrev_b32 v207, 7, v201"); e("v_lshl_add_u32 v207, v200, 2, v207")
    e("s_waitcnt vmcnt(0)")
    for i in range(4): e(f"ds_write_b32 v207, v{100+i} offset:{i*32}"); e(f"ds_write_b32 v207, v{104+i} offset:{4096+i*32}")
    e("s_waitcnt lgkmcnt(0)"); e("s_barrier")
RED=16384
def gemv(wsrds,rowbytes,rpc,kbase_sg,col_sg):
    e("s_mov_b32 s30, 0x05040100"); e("s_mov_b32 s31, 0x07060302")
    e("v_and_b32 v220, 7, v0"); e("v_lshrrev_b32 v221, 3, v0")
    e(f"v_mul_u32_u24 v222, {rpc*rowbytes}, v221"); e("v_lshl_add_u32 v222, v220, 4, v222")
    e(f"s_mul_i32 s29, s{kbase_sg}, {rowbytes}") if kbase_sg else e("s_mov_b32 s29, 0")
    e(f"s_lshl_b32 s28, s{col_sg}, 7"); e("s_add_u32 s29, s29, s28")
    e(f"v_mul_u32_u24 v223, {rpc*16}, v221")
    for m in range(wsrds):
        for i in range(64): e(f"v_mov_b32 v{4+i}, 0")
        for r in range(rpc):
            e(f"v_add_u32 v224, {r*rowbytes}, v222")
            e(f"buffer_load_dwordx4 v[{100+4*r}:{103+4*r}], v224, s[{8+4*m}:{11+4*m}], s29 offen")
        for kp in range(rpc//2):
            e(f"ds_read_b128 v[{80}:{83}], v223 offset:{kp*32}"); e(f"ds_read_b128 v[{84}:{87}], v223 offset:{kp*32+16}")
            e(f"s_waitcnt vmcnt({rpc-2-2*kp}) lgkmcnt(0)")
            a=100+8*kp
            for j in range(4):
                e(f"v_perm_b32 v{90+2*j}, v{a+4+j}, v{a+j}, s30"); e(f"v_perm_b32 v{91+2*j}, v{a+4+j}, v{a+j}, s31")
            for b in range(8):
                for c in range(8): e(f"v_dot2_f32_bf16 v{4+b*8+c}, v{90+c}, v{80+b}, v{4+b*8+c}")
        e("s_nop 4")
        e("v_lshlrev_b32 v225, 11, v221"); e("v_lshl_add_u32 v225, v220, 5, v225")
        e("s_barrier")
        for b in range(8):
            e(f"ds_write_b128 v225, v[{4+b*8}:{7+b*8}] offset:{RED+b*256}"); e(f"ds_write_b128 v225, v[{8+b*8}:{11+b*8}] offset:{RED+b*256+16}")
        e("s_waitcnt lgkmcnt(0)"); e("s_barrier")
        e("v_lshlrev_b32 v226, 3, v0"); e(f"v_add_u32 v226, {RED}, v226")
        for k in range(32): e(f"ds_read_b64 v[{4+2*k}:{5+2*k}], v226 offset:{k*2048}")
        e("s_waitcnt lgkmcnt(0)")
        d=210+2*m
        e(f"v_mov_b32 v{d}, 0"); e(f"v_mov_b32 v{d+1}, 0")
        for k in range(32): e(f"v_add_f32 v{d}, v{d}, v{4+2*k}"); e(f"v_add_f32 v{d+1}, v{d+1}, v{5+2*k}")
head("k1_kernel",54); srd(8,P_WM,576*3456*2); srd(16,P_C,9216); srd(24,P_WS,WSZ); e("s_waitcnt lgkmcnt(0)")
bj(); e("v_mul_u32_u24 v204, 1152, v200"); e("v_lshl_add_u32 v204, v201, 2, v204")
for i in range(9): e(f"buffer_load_dword v{100+i}, v204, s[16:19], 0 offen offset:{i*128}")
e("v_lshlrev_b32 v207, 5, v201"); e("v_lshl_add_u32 v207, v200, 2, v207"); e("s_waitcnt vmcnt(0)")
for i in range(9):
    e(f"v_lshlrev_b32 v110, 16, v{100+i}"); e(f"v_and_b32 v111, 0xffff0000, v{100+i}")
    for v in (110,111):
        e(f"v_mul_f32 v112, {f2u(-LOG2E)}, v{v}"); e("v_exp_f32 v112, v112"); e("s_nop 0"); e("v_add_f32 v112, 1.0, v112"); e("v_rcp_f32 v112, v112"); e("s_nop 0"); e(f"v_mul_f32 v{v}, v{v}, v112")
    e("v_cvt_pk_bf16_f32 v208, v110, v111"); e(f"ds_write_b32 v207, v208 offset:{i*1024}")
e("s_waitcnt lgkmcnt(0)"); e("s_barrier")
gemv(1,6912,18,0,2)
bfround(210,209); bfround(211,209)
e("v_mul_u32_u24 v204, 0x3600, v200"); e("v_lshl_add_u32 v204, v201, 3, v204"); e("s_lshl_b32 s28, s2, 8")
e("buffer_store_dwordx2 v[210:211], v204, s[24:27], s28 offen")
tail("k1_kernel")
head("k2_kernel",64); srd(8,P_WQ,576*4096*2); srd(16,P_X,9216); srd(24,P_WS,WSZ); e("s_waitcnt lgkmcnt(0)")
bj(); e("v_mul_u32_u24 v204, 1152, v200"); e("v_lshl_add_u32 v204, v201, 2, v204")
for i in range(9): e(f"buffer_load_dword v{140+i}, v204, s[16:19], 0 offen offset:{i*128}")
e("s_waitcnt vmcnt(0)")
for i in range(9): e(f"v_lshlrev_b32 v{160+2*i}, 16, v{140+i}"); e(f"v_and_b32 v{161+2*i}, 0xffff0000, v{140+i}")
ln_mod(160,0,1)
gemv(1,8192,18,0,2)
e("v_cvt_pk_bf16_f32 v210, v210, v211"); e("v_lshlrev_b32 v204, 13, v200"); e("v_lshl_add_u32 v204, v201, 2, v204")
e("s_lshl_b32 s28, s2, 7"); e(f"s_add_u32 s28, s28, {WS_Q}")
e("buffer_store_dword v210, v204, s[24:27], s28 offen")
tail("k2_kernel")
head("k3_kernel",512); srd(8,P_K,0x10000000); srd(12,P_V,0x10000000); srd(24,P_WS,WSZ); srd(20,P_DBG,256)
e("v_lshrrev_b32 v1, 6, v0"); e("s_nop 0"); e("v_readfirstlane_b32 s3, v1")
e("s_lshr_b32 s4, s2, 2"); e("s_lshl_b32 s5, s2, 19"); e("s_lshl_b32 s6, s3, 17"); e("s_add_u32 s5, s5, s6")
e("v_and_b32 v1, 63, v0"); e("v_lshlrev_b32 v2, 4, v1"); e("v_add_u32 v3, 4096, v2")
e("v_and_b32 v4, 15, v0"); e("v_lshlrev_b32 v4, 4, v4"); e("s_lshl_b32 s6, s4, 9"); e(f"s_add_u32 s6, s6, {WS_Q}")
e("s_waitcnt lgkmcnt(0)")
e("buffer_load_dwordx4 v[8:11], v4, s[24:27], s6 offen"); e("buffer_load_dwordx4 v[12:15], v4, s[24:27], s6 offen offset:256")
KB=[32,64]; VB=[96,128]; S=160; ACC=176; PP=192
e("s_mov_b32 s30, 0x05040100"); e("s_mov_b32 s31, 0x07060302"); e(f"s_mov_b32 s7, {f2u(128**-0.5*LOG2E)}")
for i in range(16): e(f"v_mov_b32 v{ACC+i}, 0")
e(f"v_mov_b32 v16, {f2u(-1e30)}"); e(f"v_mov_b32 v17, {f2u(-1e30)}"); e("v_mov_b32 v18, 0"); e("v_mov_b32 v19, 0")
def ld(base,sr):
    for t in range(8): e(f"buffer_load_dwordx4 v[{base+4*t}:{base+4*t+3}], v{2+(t>>2)}, s[{sr}:{sr+3}], s5 offen offset:{(t&3)*1024}")
ld(KB[0],8); ld(VB[0],12); e("s_add_u32 s5, s5, 8192"); ld(KB[1],8); ld(VB[1],12); e("s_add_u32 s5, s5, 8192")
def tile(p,w1,w2,issue):
    e(f"s_waitcnt vmcnt({w1})")
    for j in range(4):
        for t in range(8):
            for h in range(2):
                c = "0" if j==0 else f"v{S+2*t+h}"
                e(f"v_dot2_f32_bf16 v{S+2*t+h}, v{KB[p]+4*t+j}, v{8+4*h+j}, {c}")
    for r in (8,4,2,1):
        for i in range(16): e(f"v_add_f32_dpp v{S+i}, v{S+i}, v{S+i} row_ror:{r} row_mask:0xf bank_mask:0xf")
    if issue: ld(KB[p],8)
    for h in range(2):
        e(f"v_max3_f32 v20, v{S+h}, v{S+2+h}, v{16+h}")
        for t in (2,4,6): e(f"v_max3_f32 v20, v{S+2*t+h}, v{S+2*t+2+h}, v20")
        e(f"v_sub_f32 v21, v{16+h}, v20"); e("v_mul_f32 v21, s7, v21"); e("v_exp_f32 v21, v21")
        e(f"v_mov_b32 v{16+h}, v20"); e("v_mul_f32 v22, s7, v20")
        for t in range(8): e(f"v_fma_f32 v{S+2*t+h}, v{S+2*t+h}, s7, -v22")
        for t in range(8): e(f"v_exp_f32 v{S+2*t+h}, v{S+2*t+h}")
        e(f"v_mul_f32 v{18+h}, v{18+h}, v21")
        for i in range(8): e(f"v_mul_f32 v{ACC+8*h+i}, v{ACC+8*h+i}, v21")
        for t in range(8): e(f"v_add_f32 v{18+h}, v{18+h}, v{S+2*t+h}")
        for u in range(4): e(f"v_cvt_pk_bf16_f32 v{PP+4*h+u}, v{S+4*u+h}, v{S+4*u+2+h}")
    e(f"s_waitcnt vmcnt({w2})")
    for u in range(4):
        for j in range(4):
            a=VB[p]+8*u+j
            e(f"v_perm_b32 v{24+2*j}, v{a+4}, v{a}, s30"); e(f"v_perm_b32 v{25+2*j}, v{a+4}, v{a}, s31")
        for h in range(2):
            for c in range(8): e(f"v_dot2_f32_bf16 v{ACC+8*h+c}, v{24+c}, v{PP+4*h+u}, v{ACC+8*h+c}")
    if issue: ld(VB[p],12);
    if issue and p==1: e("s_add_u32 s5, s5, 8192")
e("s_mov_b32 s16, 0")
e("k3_loop:")
def tile0():
    tile(0,24,24,True); e("s_add_u32 s5, s5, 8192")
tile0(); tile(1,24,24,True)
e("s_add_u32 s16, s16, 1"); e("s_cmp_lt_u32 s16, 7"); e("s_cbranch_scc1 k3_loop")
tile(0,24,16,False); tile(1,8,0,False)
e("s_nop 4"); e("v_lshrrev_b32 v20, 4, v0"); e("v_lshlrev_b32 v21, 10, v20"); e("v_add_u32 v21, v21, v4"); e("v_add_u32 v21, v21, v4")
for h in range(2):
    e(f"ds_write_b128 v21, v[{ACC+8*h}:{ACC+8*h+3}] offset:{h*512}"); e(f"ds_write_b128 v21, v[{ACC+8*h+4}:{ACC+8*h+7}] offset:{h*512+16}")
e("v_mul_f32 v16, s7, v16"); e("v_mul_f32 v17, s7, v17"); e("v_lshlrev_b32 v20, 4, v20")
e("v_mov_b32 v22, v16"); e("v_mov_b32 v23, v18"); e("v_mov_b32 v24, v17"); e("v_mov_b32 v25, v19")
e("ds_write_b128 v20, v[22:25] offset:16384"); e("s_waitcnt lgkmcnt(0)"); e("s_barrier")
e("v_lshrrev_b32 v20, 7, v0"); e("v_lshlrev_b32 v21, 3, v20"); e("v_lshlrev_b32 v22, 2, v0")
for r in range(16): e(f"ds_read_b64 v[{32+2*r}:{33+2*r}], v21 offset:{16384+r*16}"); e(f"ds_read_b32 v{64+r}, v22 offset:{r*1024}")
e("s_waitcnt lgkmcnt(0)"); e("v_mov_b32 v23, v32")
for r in range(1,16): e(f"v_max_f32 v23, v23, v{32+2*r}")
e("v_mov_b32 v24, 0"); e("v_mov_b32 v25, 0")
for r in range(16):
    e(f"v_sub_f32 v26, v{32+2*r}, v23"); e("v_exp_f32 v26, v26"); e("s_nop 0"); e(f"v_fmac_f32 v24, v26, v{33+2*r}"); e(f"v_fmac_f32 v25, v26, v{64+r}")
e("s_lshl_b32 s6, s2, 10"); e(f"s_add_u32 s6, s6, {WS_PART}"); e("buffer_store_dword v25, v22, s[24:27], s6 offen sc1")
e("s_lshl_b32 s6, s2, 4"); e(f"s_add_u32 s6, s6, {WS_ML}"); e("v_mov_b32 v28, v23"); e("v_mov_b32 v29, v24"); e("buffer_store_dwordx2 v[28:29], v21, s[24:27], s6 offen sc1")
e("s_waitcnt vmcnt(0)"); e("s_barrier")
e("s_lshr_b32 s6, s4, 1"); e("s_lshl_b32 s6, s6, 2"); e("s_and_b32 s17, s4, 1"); e("s_lshl_b32 s17, s17, 4"); e("s_lshl_b32 s18, 1, s17")
e("v_mov_b32 v26, s18"); e("v_mov_b32 v27, 0"); e("ds_write_b32 v27, v27 offset:20000")
e("v_cmp_eq_u32 vcc, 0, v0"); e("s_and_saveexec_b64 s[28:29], vcc"); e("s_cbranch_execz k3_na")
e("buffer_atomic_add v26, v27, s[20:23], s6 offen sc0"); e("s_waitcnt vmcnt(0)"); e("ds_write_b32 v27, v26 offset:20000"); e("s_waitcnt lgkmcnt(0)")
e("k3_na:"); e("s_or_b64 exec, exec, s[28:29]"); e("s_barrier")
e("ds_read_b32 v26, v27 offset:20000"); e("s_waitcnt lgkmcnt(0)"); e("v_readfirstlane_b32 s18, v26"); e("s_lshr_b32 s18, s18, s17"); e("s_and_b32 s18, s18, 0xffff")
e("s_cmp_lg_u32 s18, 3"); e("s_cbranch_scc1 k3_kernel_end")
e("s_lshl_b32 s6, s4, 12"); e(f"s_add_u32 s6, s6, {WS_PART}"); e("s_lshl_b32 s19, s4, 6"); e(f"s_add_u32 s19, s19, {WS_ML}")
for i in range(4):
    e(f"buffer_load_dword v{64+i}, v22, s[24:27], s6 offen offset:{i*1024} sc1"); e(f"buffer_load_dwordx2 v[{32+2*i}:{33+2*i}], v21, s[24:27], s19 offen offset:{i*16} sc1")
e("s_waitcnt vmcnt(0)"); e("v_max3_f32 v23, v32, v34, v36"); e("v_max_f32 v23, v23, v38"); e("v_mov_b32 v24, 0"); e("v_mov_b32 v25, 0")
for r in range(4):
    e(f"v_sub_f32 v26, v{32+2*r}, v23"); e("v_exp_f32 v26, v26"); e("s_nop 0"); e(f"v_fmac_f32 v24, v26, v{33+2*r}"); e(f"v_fmac_f32 v25, v26, v{64+r}")
e("v_rcp_f32 v24, v24"); e("s_nop 0"); e("v_mul_f32 v25, v25, v24"); e("v_cvt_pk_bf16_f32 v25, v25, v25"); e("v_lshlrev_b32 v22, 1, v0")
e("s_lshl_b32 s6, s4, 9"); e(f"s_add_u32 s6, s6, {WS_O}"); e("buffer_store_short v25, v22, s[24:27], s6 offen")
tail("k3_kernel")
def rccc(n):
    e(f"s_mul_hi_u32 s4, s2, {(2**32+8)//9}"); e("s_mul_i32 s5, s4, 9"); e("s_sub_u32 s5, s2, s5"); e("s_lshl_b32 s6, s4, 9")
head("k4_kernel",72); srd(8,P_WO,4096*576*2); srd(24,P_WS,WSZ); e("s_waitcnt lgkmcnt(0)"); rccc(9)
act_from_ws(WS_O,4096,4); gemv(1,1152,16,6,5)
def pstore(off,sc):
    e("v_mul_u32_u24 v204, 2304, v200"); e("v_lshl_add_u32 v204, v201, 3, v204"); e("s_mul_i32 s28, s4, 18432"); e("s_lshl_b32 s29, s5, 8"); e("s_add_u32 s28, s28, s29"); e(f"s_add_u32 s28, s28, {off}")
    e(f"buffer_store_dwordx2 v[210:211], v204, s[24:27], s28 offen {sc}")
pstore(WS_WOP,""); tail("k4_kernel")
head("k5_kernel",72); srd(8,P_WG,576*4608*2); srd(12,P_WU,576*4608*2); srd(16,P_X,9216); srd(24,P_WS,WSZ); e("s_waitcnt lgkmcnt(0)")
bj(); e("v_mul_u32_u24 v204, 1152, v200"); e("v_lshl_add_u32 v204, v201, 2, v204")
for i in range(9): e(f"buffer_load_dword v{140+i}, v204, s[16:19], 0 offen offset:{i*128}")
e("v_lshlrev_b32 v205, 1, v204"); e(f"v_add_u32 v205, {WS_WOP}, v205")
for i in range(18): e(f"v_mov_b32 v{160+i}, 0")
for rc in range(8):
    for i in range(9): e(f"buffer_load_dwordx2 v[{100+2*i}:{101+2*i}], v205, s[24:27], 0 offen offset:{i*256}")
    e("s_waitcnt vmcnt(0)")
    for i in range(18): e(f"v_add_f32 v{160+i}, v{160+i}, v{100+i}")
    e("v_add_u32 v205, 18432, v205")
e("v_mul_u32_u24 v206, 0x3600, v200"); e("v_lshl_add_u32 v206, v201, 3, v206"); e("v_add_u32 v206, 4608, v206")
for i in range(9): e(f"buffer_load_dwordx2 v[{100+2*i}:{101+2*i}], v206, s[24:27], 0 offen offset:{i*256}")
e("s_waitcnt vmcnt(0)")
for i in range(9):
    e(f"v_lshlrev_b32 v{120+2*i}, 16, v{140+i}"); e(f"v_and_b32 v{121+2*i}, 0xffff0000, v{140+i}")
for i in range(18):
    bfround(160+i,209); e(f"v_fma_f32 v{160+i}, v{160+i}, v{100+i}, v{120+i}"); bfround(160+i,209)
e("s_cmp_lg_u32 s2, 0"); e("s_cbranch_scc1 k5_nx")
e("v_lshlrev_b32 v205, 1, v204")
e(f"s_mov_b32 s28, {WS_X1}")
for i in range(9): e(f"buffer_store_dwordx2 v[{160+2*i}:{161+2*i}], v205, s[24:27], s28 offen offset:{i*256}")
e("k5_nx:")
ln_mod(160,3,4)
gemv(2,9216,18,0,2)
for v in (210,211,212,213): bfround(v,209)
for g,u in ((210,212),(211,213)):
    e(f"v_mul_f32 v214, v{g}, v{g}"); e(f"v_mul_f32 v214, {f2u(0.044715)}, v214"); e("v_add_f32 v214, 1.0, v214"); e(f"v_mul_f32 v214, v214, v{g}")
    e(f"v_mul_f32 v214, {f2u(2*0.7978845608028654*LOG2E)}, v214"); e("v_exp_f32 v214, v214"); e("s_nop 0"); e("v_add_f32 v214, 1.0, v214"); e("v_rcp_f32 v214, v214"); e("s_nop 0")
    e("v_sub_f32 v214, 1.0, v214"); e(f"v_mul_f32 v{g}, v{g}, v214"); bfround(g,209); e(f"v_mul_f32 v{g}, v{g}, v{u}")
e("v_cvt_pk_bf16_f32 v210, v210, v211"); e("v_mul_u32_u24 v204, 9216, v200"); e("v_lshl_add_u32 v204, v201, 2, v204")
e("s_lshl_b32 s28, s2, 7"); e(f"s_add_u32 s28, s28, {WS_ACT}"); e("buffer_store_dword v210, v204, s[24:27], s28 offen")
tail("k5_kernel")
head("k6_kernel",81); srd(8,P_WD,4608*576*2); srd(24,P_WS,WSZ); srd(20,P_DBG,256); srd(16,P_OUT,9216); e("s_waitcnt lgkmcnt(0)"); rccc(9)
act_from_ws(WS_ACT,4608,4); gemv(1,1152,16,6,5); pstore(WS_DP,"sc1")
e("s_waitcnt vmcnt(0)"); e("s_barrier"); e("s_lshl_b32 s6, s5, 2")
e("v_mov_b32 v26, 1"); e("v_mov_b32 v27, 0")
e("v_cmp_eq_u32 vcc, 0, v0"); e("s_and_saveexec_b64 s[28:29], vcc"); e("s_cbranch_execz k6_na")
e("buffer_atomic_add v26, v27, s[20:23], s6 offen sc0"); e("s_waitcnt vmcnt(0)"); e("ds_write_b32 v27, v26"); e("s_waitcnt lgkmcnt(0)")
e("k6_na:"); e("s_or_b64 exec, exec, s[28:29]"); e("s_barrier")
e("ds_read_b32 v26, v27"); e("s_waitcnt lgkmcnt(0)"); e("v_readfirstlane_b32 s7, v26"); e("s_cmp_lg_u32 s7, 8"); e("s_cbranch_scc1 k6_kernel_end")
e("s_lshl_b32 s29, s5, 8"); e(f"s_add_u32 s28, s29, {WS_DP}")
for rc in range(9): e(f"v_add_u32 v205, {rc*18432}, v204"); e(f"buffer_load_dwordx2 v[{30+2*rc}:{31+2*rc}], v205, s[24:27], s28 offen sc1")
e(f"s_add_u32 s28, s29, {WS_X1}"); e("buffer_load_dwordx2 v[50:51], v204, s[24:27], s28 offen")
e("v_mul_u32_u24 v206, 0x3600, v200"); e("v_lshl_add_u32 v206, v201, 3, v206"); e(f"s_add_u32 s28, s29, {5*2304}"); e("buffer_load_dwordx2 v[52:53], v206, s[24:27], s28 offen")
e("s_waitcnt vmcnt(0)")
for rc in range(1,9): e(f"v_add_f32 v30, v30, v{30+2*rc}"); e(f"v_add_f32 v31, v31, v{31+2*rc}")
bfround(30,209); bfround(31,209); e("v_fma_f32 v30, v30, v52, v50"); e("v_fma_f32 v31, v31, v53, v51"); e("v_cvt_pk_bf16_f32 v30, v30, v31")
e("v_lshrrev_b32 v204, 1, v204"); e("s_lshr_b32 s29, s29, 1"); e("buffer_store_dword v30, v204, s[16:19], s29 offen")
tail("k6_kernel")
ks=[("k1_kernel",54,81920),("k2_kernel",64,81920),("k3_kernel",512,20480),("k4_kernel",72,81920),("k5_kernel",72,81920),("k6_kernel",81,81920)]
hdr=open("adaLN_cond__gqa_block_cached__geglu_ffn__decode.s.ref").read().split("\n")
out=[l for l in hdr if l.startswith(";") and "@launch" not in l and "Override" not in l and "grid=ceil" not in l]
for n,g,l in ks: out.append(f"; @launch kernel={n} grid=({g},1,1) block=(256,1,1) lds={l}")
out+=['.amdgcn_target "amdgcn-amd-amdhsa--gfx950"',".text"]+L+['.section .rodata,"a"']
for n,g,l in ks:
    out+=[".p2align 6",f".amdhsa_kernel {n}",".amdhsa_next_free_vgpr 256",".amdhsa_next_free_sgpr 102",".amdhsa_accum_offset 256",".amdhsa_group_segment_fixed_size 0",".amdhsa_kernarg_size 112",".amdhsa_user_sgpr_count 2",".amdhsa_user_sgpr_kernarg_segment_ptr 1",".amdhsa_system_sgpr_workgroup_id_x 1",".end_amdhsa_kernel"]
open("adaLN_cond__gqa_block_cached__geglu_ffn__decode.s","w").write("\n".join(out)+"\n")
```

```python
import sys
L=[]
def e(s): L.append(s)
WS_MOD=0; WS_Q=0x20000; WS_PART=0x40000; WS_ML=0xC0000; WS_O=0xD0000; WS_WOP=0xE0000; WS_X1=0x110000; WS_ACT=0x120000; WS_DP=0x140000
WSZ=0x200000
P_X,P_K,P_V,P_WQ,P_WO,P_BX,P_WG,P_WU,P_WD,P_C,P_WM,P_OUT,P_DBG,P_WS=[8*i for i in range(14)]
LOG2E=1.4426950408889634
import struct
def f2u(f): return "0x%08x"%struct.unpack("<I",struct.pack("<f",f))[0]
def srd(d,ptr,size):
    e(f"s_load_dwordx2 s[{d}:{d+1}], s[0:1], {ptr}")
    e(f"s_mov_b32 s{d+2}, {size}")
    e(f"s_mov_b32 s{d+3}, 0x00020000")
def head(name,nwg):
    e(f".globl {name}"); e(".p2align 8"); e(f".type {name},@function"); e(f"{name}:")
    e(f"s_cmp_ge_u32 s2, {nwg}"); e(f"s_cbranch_scc1 {name}_end")
def tail(name):
    e(f"{name}_end:"); e("s_endpgm")
def allred32(v,op="v_add_f32"):
    for r in (8,4,2,1):
        e("s_nop 1"); e(f"{op}_dpp v{v}, v{v}, v{v} row_ror:{r} row_mask:0xf bank_mask:0xf")
    e(f"ds_swizzle_b32 v250, v{v} offset:0x401F"); e("s_waitcnt lgkmcnt(0)"); e(f"{op} v{v}, v250, v{v}")
def bfround(v,t):
    e(f"v_cvt_pk_bf16_f32 v{t}, v{v}, v{v}"); e(f"v_lshlrev_b32 v{v}, 16, v{t}")
def bj():
    e("v_lshrrev_b32 v200, 5, v0"); e("v_and_b32 v201, 31, v0")
def ln_mod(xb, sidx, cidx):
    e(f"v_mov_b32 v202, 0")
    for i in range(18): e(f"v_add_f32 v202, v202, v{xb+i}")
    allred32(202); e(f"v_mul_f32 v202, {f2u(1/576)}, v202")
    e("v_mov_b32 v203, 0")
    for i in range(18):
        e(f"v_sub_f32 v{xb+i}, v{xb+i}, v202"); e(f"v_fmac_f32 v203, v{xb+i}, v{xb+i}")
    allred32(203); e(f"v_mul_f32 v203, {f2u(1/576)}, v203"); e(f"v_add_f32 v203, {f2u(1e-5)}, v203"); e("v_rsq_f32 v203, v203")
    e("v_mul_u32_u24 v204, 0x3600, v200"); e("v_lshl_add_u32 v204, v201, 3, v204")
    for i in range(9):
        e(f"buffer_load_dwordx2 v[{4+2*i}:{5+2*i}], v204, s[24:27], 0 offen offset:{i*256}") if False else None
    e(f"v_add_u32 v205, {sidx*2304}, v204"); e(f"v_add_u32 v206, {cidx*2304}, v204")
    for i in range(9):
        e(f"buffer_load_dwordx2 v[{4+2*i}:{5+2*i}], v205, s[24:27], 0 offen offset:{i*256}")
        e(f"buffer_load_dwordx2 v[{24+2*i}:{25+2*i}], v206, s[24:27], 0 offen offset:{i*256}")
    e("s_waitcnt vmcnt(0)")
    e("v_lshlrev_b32 v207, 5, v201"); e("v_lshl_add_u32 v207, v200, 2, v207")
    for i in range(9):
        for k in range(2):
            x=xb+2*i+k
            e(f"v_mul_f32 v{x}, v{x}, v203"); e(f"v_add_f32 v{24+2*i+k}, 1.0, v{24+2*i+k}")
            e(f"v_fma_f32 v{x}, v{x}, v{24+2*i+k}, v{4+2*i+k}")
        e(f"v_cvt_pk_bf16_f32 v208, v{xb+2*i}, v{xb+2*i+1}")
        e(f"ds_write_b32 v207, v208 offset:{i*1024}")
    e("s_waitcnt lgkmcnt(0)"); e("s_barrier")
def act_from_ws(wsoff,rowlen,rc_sg):
    bj()
    e(f"v_mul_u32_u24 v204, {rowlen*2}, v200"); e("v_lshl_add_u32 v204, v201, 4, v204")
    e(f"s_lshl_b32 s28, s{rc_sg}, 10"); e(f"s_add_u32 s28, s28, {wsoff}")
    e("buffer_load_dwordx4 v[4:7], v204, s[24:27], s28 offen")
    e("buffer_load_dwordx4 v[8:11], v204, s[24:27], s28 offen offset:512")
    e("v_lshlrev_b32 v207, 7, v201"); e("v_lshl_add_u32 v207, v200, 2, v207")
    e("s_waitcnt vmcnt(0)")
    for i in range(4): e(f"ds_write_b32 v207, v{4+i} offset:{i*32}"); e(f"ds_write_b32 v207, v{8+i} offset:{4096+i*32}")
    e("s_waitcnt lgkmcnt(0)"); e("s_barrier")
RED=16384
def gemv_pre(rowbytes,rpc,kbase_sg,col_sg):
    e("v_and_b32 v220, 7, v0"); e("v_lshrrev_b32 v221, 3, v0")
    e(f"v_mul_u32_u24 v222, {rpc*rowbytes}, v221"); e("v_lshl_add_u32 v222, v220, 4, v222")
    e(f"s_mul_i32 s29, s{kbase_sg}, {rowbytes}") if kbase_sg else e("s_mov_b32 s29, 0")
    e(f"s_lshl_b32 s28, s{col_sg}, 7"); e("s_add_u32 s29, s29, s28")
    for r in range(rpc):
        e(f"v_add_u32 v224, {r*rowbytes}, v222")
        e(f"buffer_load_dwordx4 v[{100+4*r}:{103+4*r}], v224, s[8:11], s29 offen")
def gemv(wsrds,rowbytes,rpc,kbase_sg,col_sg):
    e("s_mov_b32 s30, 0x05040100"); e("s_mov_b32 s31, 0x07060302")
    e(f"v_mul_u32_u24 v223, {rpc*16}, v221")
    for m in range(wsrds):
        for i in range(64): e(f"v_mov_b32 v{4+i}, 0")
        for r in range(rpc if m else 0):
            e(f"v_add_u32 v224, {r*rowbytes}, v222")
            e(f"buffer_load_dwordx4 v[{100+4*r}:{103+4*r}], v224, s[{8+4*m}:{11+4*m}], s29 offen")
        for kp in range(rpc//2):
            e(f"ds_read_b128 v[{80}:{83}], v223 offset:{kp*32}"); e(f"ds_read_b128 v[{84}:{87}], v223 offset:{kp*32+16}")
            e(f"s_waitcnt vmcnt({rpc-2-2*kp}) lgkmcnt(0)")
            a=100+8*kp
            for j in range(4):
                e(f"v_perm_b32 v{90+2*j}, v{a+4+j}, v{a+j}, s30"); e(f"v_perm_b32 v{91+2*j}, v{a+4+j}, v{a+j}, s31")
            for b in range(8):
                for c in range(8): e(f"v_dot2_f32_bf16 v{4+b*8+c}, v{90+c}, v{80+b}, v{4+b*8+c}")
        e("s_nop 4")
        e("v_lshlrev_b32 v225, 11, v221"); e("v_lshl_add_u32 v225, v220, 5, v225")
        e("s_barrier")
        for b in range(8):
            e(f"ds_write_b128 v225, v[{4+b*8}:{7+b*8}] offset:{RED+b*256}"); e(f"ds_write_b128 v225, v[{8+b*8}:{11+b*8}] offset:{RED+b*256+16}")
        e("s_waitcnt lgkmcnt(0)"); e("s_barrier")
        e("v_lshlrev_b32 v226, 3, v0"); e(f"v_add_u32 v226, {RED}, v226")
        for k in range(32): e(f"ds_read_b64 v[{4+2*k}:{5+2*k}], v226 offset:{k*2048}")
        e("s_waitcnt lgkmcnt(0)")
        d=210+2*m
        e(f"v_mov_b32 v{d}, 0"); e(f"v_mov_b32 v{d+1}, 0")
        for k in range(32): e(f"v_add_f32 v{d}, v{d}, v{4+2*k}"); e(f"v_add_f32 v{d+1}, v{d+1}, v{5+2*k}")
head("k1_kernel",54); srd(8,P_WM,576*3456*2); srd(16,P_C,9216); srd(24,P_WS,WSZ); e("s_waitcnt lgkmcnt(0)")
bj(); e("v_mul_u32_u24 v204, 1152, v200"); e("v_lshl_add_u32 v204, v201, 2, v204")
for i in range(9): e(f"buffer_load_dword v{44+i}, v204, s[16:19], 0 offen offset:{i*128}")
gemv_pre(6912,18,0,2)
e("v_lshlrev_b32 v207, 5, v201"); e("v_lshl_add_u32 v207, v200, 2, v207"); e("s_waitcnt vmcnt(18)")
for i in range(9):
    e(f"v_lshlrev_b32 v90, 16, v{44+i}"); e(f"v_and_b32 v91, 0xffff0000, v{44+i}")
    for v in (90,91):
        e(f"v_mul_f32 v92, {f2u(-LOG2E)}, v{v}"); e("v_exp_f32 v92, v92"); e("s_nop 0"); e("v_add_f32 v92, 1.0, v92"); e("v_rcp_f32 v92, v92"); e("s_nop 0"); e(f"v_mul_f32 v{v}, v{v}, v92")
    e("v_cvt_pk_bf16_f32 v208, v90, v91"); e(f"ds_write_b32 v207, v208 offset:{i*1024}")
e("s_waitcnt lgkmcnt(0)"); e("s_barrier")
gemv(1,6912,18,0,2)
bfround(210,209); bfround(211,209)
e("v_mul_u32_u24 v204, 0x3600, v200"); e("v_lshl_add_u32 v204, v201, 3, v204"); e("s_lshl_b32 s28, s2, 8")
e("buffer_store_dwordx2 v[210:211], v204, s[24:27], s28 offen")
tail("k1_kernel")
head("k2_kernel",64); srd(8,P_WQ,576*4096*2); srd(16,P_X,9216); srd(24,P_WS,WSZ); e("s_waitcnt lgkmcnt(0)")
bj(); e("v_mul_u32_u24 v204, 1152, v200"); e("v_lshl_add_u32 v204, v201, 2, v204")
for i in range(9): e(f"buffer_load_dword v{44+i}, v204, s[16:19], 0 offen offset:{i*128}")
gemv_pre(8192,18,0,2)
e("s_waitcnt vmcnt(18)")
for i in range(9): e(f"v_lshlrev_b32 v{60+2*i}, 16, v{44+i}"); e(f"v_and_b32 v{61+2*i}, 0xffff0000, v{44+i}")
ln_mod(60,0,1)
gemv(1,8192,18,0,2)
e("v_cvt_pk_bf16_f32 v210, v210, v211"); e("v_lshlrev_b32 v204, 13, v200"); e("v_lshl_add_u32 v204, v201, 2, v204")
e("s_lshl_b32 s28, s2, 7"); e(f"s_add_u32 s28, s28, {WS_Q}")
e("buffer_store_dword v210, v204, s[24:27], s28 offen")
tail("k2_kernel")
head("k3_kernel",512); srd(8,P_K,0x10000000); srd(12,P_V,0x10000000); srd(24,P_WS,WSZ); srd(20,P_DBG,256)
e("v_lshrrev_b32 v1, 6, v0"); e("s_nop 0"); e("v_readfirstlane_b32 s3, v1")
e("s_lshr_b32 s4, s2, 2"); e("s_lshl_b32 s5, s2, 19"); e("s_lshl_b32 s6, s3, 17"); e("s_add_u32 s5, s5, s6")
e("v_and_b32 v1, 63, v0"); e("v_lshlrev_b32 v2, 4, v1"); e("v_add_u32 v3, 4096, v2")
e("v_and_b32 v4, 15, v0"); e("v_lshlrev_b32 v4, 4, v4"); e("s_lshl_b32 s6, s4, 9"); e(f"s_add_u32 s6, s6, {WS_Q}")
e("s_waitcnt lgkmcnt(0)")
e("buffer_load_dwordx4 v[8:11], v4, s[24:27], s6 offen"); e("buffer_load_dwordx4 v[12:15], v4, s[24:27], s6 offen offset:256")
KB=[32,64]; VB=[96,128]; S=160; ACC=176; PP=192
e("s_mov_b32 s30, 0x05040100"); e("s_mov_b32 s31, 0x07060302"); e(f"s_mov_b32 s7, {f2u(128**-0.5*LOG2E)}")
for i in range(16): e(f"v_mov_b32 v{ACC+i}, 0")
e(f"v_mov_b32 v16, {f2u(-1e30)}"); e(f"v_mov_b32 v17, {f2u(-1e30)}"); e("v_mov_b32 v18, 0"); e("v_mov_b32 v19, 0")
def ld(base,sr):
    for t in range(8): e(f"buffer_load_dwordx4 v[{base+4*t}:{base+4*t+3}], v{2+(t>>2)}, s[{sr}:{sr+3}], s5 offen offset:{(t&3)*1024} nt")
ld(KB[0],8); ld(VB[0],12); e("s_add_u32 s5, s5, 8192"); ld(KB[1],8); ld(VB[1],12); e("s_add_u32 s5, s5, 8192")
def tile(p,w1,w2,issue):
    e(f"s_waitcnt vmcnt({w1})")
    for j in range(4):
        for t in range(8):
            for h in range(2):
                c = "0" if j==0 else f"v{S+2*t+h}"
                e(f"v_dot2_f32_bf16 v{S+2*t+h}, v{KB[p]+4*t+j}, v{8+4*h+j}, {c}")
    for r in (8,4,2,1):
        for i in range(16): e(f"v_add_f32_dpp v{S+i}, v{S+i}, v{S+i} row_ror:{r} row_mask:0xf bank_mask:0xf")
    if issue: ld(KB[p],8)
    for h in range(2):
        e(f"v_max3_f32 v20, v{S+h}, v{S+2+h}, v{16+h}")
        for t in (2,4,6): e(f"v_max3_f32 v20, v{S+2*t+h}, v{S+2*t+2+h}, v20")
        e(f"v_sub_f32 v21, v{16+h}, v20"); e("v_mul_f32 v21, s7, v21"); e("v_exp_f32 v21, v21")
        e(f"v_mov_b32 v{16+h}, v20"); e("v_mul_f32 v22, s7, v20")
        for t in range(8): e(f"v_fma_f32 v{S+2*t+h}, v{S+2*t+h}, s7, -v22")
        for t in range(8): e(f"v_exp_f32 v{S+2*t+h}, v{S+2*t+h}")
        e(f"v_mul_f32 v{18+h}, v{18+h}, v21")
        for i in range(8): e(f"v_mul_f32 v{ACC+8*h+i}, v{ACC+8*h+i}, v21")
        for t in range(8): e(f"v_add_f32 v{18+h}, v{18+h}, v{S+2*t+h}")
        for u in range(4): e(f"v_cvt_pk_bf16_f32 v{PP+4*h+u}, v{S+4*u+h}, v{S+4*u+2+h}")
    e(f"s_waitcnt vmcnt({w2})")
    for u in range(4):
        for j in range(4):
            a=VB[p]+8*u+j
            e(f"v_perm_b32 v{24+2*j}, v{a+4}, v{a}, s30"); e(f"v_perm_b32 v{25+2*j}, v{a+4}, v{a}, s31")
        for h in range(2):
            for c in range(8): e(f"v_dot2_f32_bf16 v{ACC+8*h+c}, v{24+c}, v{PP+4*h+u}, v{ACC+8*h+c}")
    if issue: ld(VB[p],12);
    if issue and p==1: e("s_add_u32 s5, s5, 8192")
e("s_mov_b32 s16, 0")
e("k3_loop:")
def tile0():
    tile(0,24,24,True); e("s_add_u32 s5, s5, 8192")
tile0(); tile(1,24,24,True)
e("s_add_u32 s16, s16, 1"); e("s_cmp_lt_u32 s16, 7"); e("s_cbranch_scc1 k3_loop")
tile(0,24,16,False); tile(1,8,0,False)
e("s_nop 4"); e("v_lshrrev_b32 v20, 4, v0"); e("v_lshlrev_b32 v21, 10, v20"); e("v_add_u32 v21, v21, v4"); e("v_add_u32 v21, v21, v4")
for h in range(2):
    e(f"ds_write_b128 v21, v[{ACC+8*h}:{ACC+8*h+3}] offset:{h*512}"); e(f"ds_write_b128 v21, v[{ACC+8*h+4}:{ACC+8*h+7}] offset:{h*512+16}")
e("v_mul_f32 v16, s7, v16"); e("v_mul_f32 v17, s7, v17"); e("v_lshlrev_b32 v20, 4, v20")
e("v_mov_b32 v22, v16"); e("v_mov_b32 v23, v18"); e("v_mov_b32 v24, v17"); e("v_mov_b32 v25, v19")
e("ds_write_b128 v20, v[22:25] offset:16384"); e("s_waitcnt lgkmcnt(0)"); e("s_barrier")
e("v_lshrrev_b32 v20, 7, v0"); e("v_lshlrev_b32 v21, 3, v20"); e("v_lshlrev_b32 v22, 2, v0")
for r in range(16): e(f"ds_read_b64 v[{32+2*r}:{33+2*r}], v21 offset:{16384+r*16}"); e(f"ds_read_b32 v{64+r}, v22 offset:{r*1024}")
e("s_waitcnt lgkmcnt(0)"); e("v_mov_b32 v23, v32")
for r in range(1,16): e(f"v_max_f32 v23, v23, v{32+2*r}")
e("v_mov_b32 v24, 0"); e("v_mov_b32 v25, 0")
for r in range(16):
    e(f"v_sub_f32 v26, v{32+2*r}, v23"); e("v_exp_f32 v26, v26"); e("s_nop 0"); e(f"v_fmac_f32 v24, v26, v{33+2*r}"); e(f"v_fmac_f32 v25, v26, v{64+r}")
e("s_lshl_b32 s6, s2, 10"); e(f"s_add_u32 s6, s6, {WS_PART}"); e("buffer_store_dword v25, v22, s[24:27], s6 offen sc1")
e("s_lshl_b32 s6, s2, 4"); e(f"s_add_u32 s6, s6, {WS_ML}"); e("v_mov_b32 v28, v23"); e("v_mov_b32 v29, v24"); e("buffer_store_dwordx2 v[28:29], v21, s[24:27], s6 offen sc1")
e("s_waitcnt vmcnt(0)"); e("s_barrier")
e("s_lshr_b32 s6, s4, 1"); e("s_lshl_b32 s6, s6, 2"); e("s_and_b32 s17, s4, 1"); e("s_lshl_b32 s17, s17, 4"); e("s_lshl_b32 s18, 1, s17")
e("v_mov_b32 v26, s18"); e("v_mov_b32 v27, 0"); e("ds_write_b32 v27, v27 offset:20000")
e("v_cmp_eq_u32 vcc, 0, v0"); e("s_and_saveexec_b64 s[28:29], vcc"); e("s_cbranch_execz k3_na")
e("buffer_atomic_add v26, v27, s[20:23], s6 offen sc0"); e("s_waitcnt vmcnt(0)"); e("ds_write_b32 v27, v26 offset:20000"); e("s_waitcnt lgkmcnt(0)")
e("k3_na:"); e("s_or_b64 exec, exec, s[28:29]"); e("s_barrier")
e("ds_read_b32 v26, v27 offset:20000"); e("s_waitcnt lgkmcnt(0)"); e("v_readfirstlane_b32 s18, v26"); e("s_lshr_b32 s18, s18, s17"); e("s_and_b32 s18, s18, 0xffff")
e("s_cmp_lg_u32 s18, 3"); e("s_cbranch_scc1 k3_kernel_end")
e("s_lshl_b32 s6, s4, 12"); e(f"s_add_u32 s6, s6, {WS_PART}"); e("s_lshl_b32 s19, s4, 6"); e(f"s_add_u32 s19, s19, {WS_ML}")
for i in range(4):
    e(f"buffer_load_dword v{64+i}, v22, s[24:27], s6 offen offset:{i*1024} sc1"); e(f"buffer_load_dwordx2 v[{32+2*i}:{33+2*i}], v21, s[24:27], s19 offen offset:{i*16} sc1")
e("s_waitcnt vmcnt(0)"); e("v_max3_f32 v23, v32, v34, v36"); e("v_max_f32 v23, v23, v38"); e("v_mov_b32 v24, 0"); e("v_mov_b32 v25, 0")
for r in range(4):
    e(f"v_sub_f32 v26, v{32+2*r}, v23"); e("v_exp_f32 v26, v26"); e("s_nop 0"); e(f"v_fmac_f32 v24, v26, v{33+2*r}"); e(f"v_fmac_f32 v25, v26, v{64+r}")
e("v_rcp_f32 v24, v24"); e("s_nop 0"); e("v_mul_f32 v25, v25, v24"); e("v_cvt_pk_bf16_f32 v25, v25, v25"); e("v_lshlrev_b32 v22, 1, v0")
e("s_lshl_b32 s6, s4, 9"); e(f"s_add_u32 s6, s6, {WS_O}"); e("buffer_store_short v25, v22, s[24:27], s6 offen")
tail("k3_kernel")
def rccc(n):
    e(f"s_mul_hi_u32 s4, s2, {(2**32+8)//9}"); e("s_mul_i32 s5, s4, 9"); e("s_sub_u32 s5, s2, s5"); e("s_lshl_b32 s6, s4, 9")
head("k4_kernel",72); srd(8,P_WO,4096*576*2); srd(24,P_WS,WSZ); srd(20,P_DBG,256); e("s_waitcnt lgkmcnt(0)"); rccc(9)
gemv_pre(1152,16,6,5); act_from_ws(WS_O,4096,4); gemv(1,1152,16,6,5)
def pstore(off,sc):
    e("v_mul_u32_u24 v204, 2304, v200"); e("v_lshl_add_u32 v204, v201, 3, v204"); e("s_mul_i32 s28, s4, 18432"); e("s_lshl_b32 s29, s5, 8"); e("s_add_u32 s28, s28, s29"); e(f"s_add_u32 s28, s28, {off}")
    e(f"buffer_store_dwordx2 v[210:211], v204, s[24:27], s28 offen {sc}")
pstore(WS_WOP,"sc1")
e("s_waitcnt vmcnt(0)"); e("s_barrier"); e("s_lshl_b32 s6, s5, 2")
e("v_mov_b32 v26, 1"); e("v_mov_b32 v27, 0")
e("v_cmp_eq_u32 vcc, 0, v0"); e("s_and_saveexec_b64 s[28:29], vcc"); e("s_cbranch_execz k4_na")
e("buffer_atomic_add v26, v27, s[20:23], s6 offen sc0"); e("s_waitcnt vmcnt(0)"); e("ds_write_b32 v27, v26"); e("s_waitcnt lgkmcnt(0)")
e("k4_na:"); e("s_or_b64 exec, exec, s[28:29]"); e("s_barrier")
e("ds_read_b32 v26, v27"); e("s_waitcnt lgkmcnt(0)"); e("v_readfirstlane_b32 s7, v26"); e("s_cmp_lg_u32 s7, 7"); e("s_cbranch_scc1 k4_kernel_end")
e("s_lshl_b32 s29, s5, 8"); e(f"s_add_u32 s28, s29, {WS_WOP}")
for rc in range(8): e(f"v_add_u32 v205, {rc*18432}, v204"); e(f"buffer_load_dwordx2 v[{30+2*rc}:{31+2*rc}], v205, s[24:27], s28 offen sc1")
e("s_waitcnt vmcnt(0)")
for rc in range(1,8): e(f"v_add_f32 v30, v30, v{30+2*rc}"); e(f"v_add_f32 v31, v31, v{31+2*rc}")
e(f"s_add_u32 s28, s29, {WS_X1+0x8000}"); e("buffer_store_dwordx2 v[30:31], v204, s[24:27], s28 offen")
tail("k4_kernel")
head("k5_kernel",72); srd(8,P_WG,576*4608*2); srd(12,P_WU,576*4608*2); srd(16,P_X,9216); srd(24,P_WS,WSZ); e("s_waitcnt lgkmcnt(0)")
bj(); e("v_mul_u32_u24 v204, 1152, v200"); e("v_lshl_add_u32 v204, v201, 2, v204")
for i in range(9): e(f"buffer_load_dword v{44+i}, v204, s[16:19], 0 offen offset:{i*128}")
e("v_lshlrev_b32 v205, 1, v204"); e(f"v_add_u32 v205, {WS_X1+0x8000}, v205")
for i in range(9): e(f"buffer_load_dwordx2 v[{60+2*i}:{61+2*i}], v205, s[24:27], 0 offen offset:{i*256}")
e("v_mul_u32_u24 v206, 0x3600, v200"); e("v_lshl_add_u32 v206, v201, 3, v206"); e("v_add_u32 v206, 4608, v206")
for i in range(9): e(f"buffer_load_dwordx2 v[{4+2*i}:{5+2*i}], v206, s[24:27], 0 offen offset:{i*256}")
gemv_pre(9216,18,0,2)
e("s_waitcnt vmcnt(18)")
for i in range(9):
    e(f"v_lshlrev_b32 v{24+2*i}, 16, v{44+i}"); e(f"v_and_b32 v{25+2*i}, 0xffff0000, v{44+i}")
for i in range(18):
    bfround(60+i,209); e(f"v_fma_f32 v{60+i}, v{60+i}, v{4+i}, v{24+i}"); bfround(60+i,209)
e("s_cmp_lg_u32 s2, 0"); e("s_cbranch_scc1 k5_nx")
e("v_lshlrev_b32 v205, 1, v204")
e(f"s_mov_b32 s28, {WS_X1}")
for i in range(9): e(f"buffer_store_dwordx2 v[{60+2*i}:{61+2*i}], v205, s[24:27], s28 offen offset:{i*256}")
e("k5_nx:")
ln_mod(60,3,4)
gemv(2,9216,18,0,2)
for v in (210,211,212,213): bfround(v,209)
for g,u in ((210,212),(211,213)):
    e(f"v_mul_f32 v214, v{g}, v{g}"); e(f"v_mul_f32 v214, {f2u(0.044715)}, v214"); e("v_add_f32 v214, 1.0, v214"); e(f"v_mul_f32 v214, v214, v{g}")
    e(f"v_mul_f32 v214, {f2u(2*0.7978845608028654*LOG2E)}, v214"); e("v_exp_f32 v214, v214"); e("s_nop 0"); e("v_add_f32 v214, 1.0, v214"); e("v_rcp_f32 v214, v214"); e("s_nop 0")
    e("v_sub_f32 v214, 1.0, v214"); e(f"v_mul_f32 v{g}, v{g}, v214"); bfround(g,209); e(f"v_mul_f32 v{g}, v{g}, v{u}")
e("v_cvt_pk_bf16_f32 v210, v210, v211"); e("v_mul_u32_u24 v204, 9216, v200"); e("v_lshl_add_u32 v204, v201, 2, v204")
e("s_lshl_b32 s28, s2, 7"); e(f"s_add_u32 s28, s28, {WS_ACT}"); e("buffer_store_dword v210, v204, s[24:27], s28 offen")
tail("k5_kernel")
head("k6_kernel",81); srd(8,P_WD,4608*576*2); srd(24,P_WS,WSZ); srd(20,P_DBG,256); srd(16,P_OUT,9216); e("s_waitcnt lgkmcnt(0)"); rccc(9)
gemv_pre(1152,16,6,5); act_from_ws(WS_ACT,4608,4); gemv(1,1152,16,6,5); pstore(WS_DP,"sc1")
e("s_waitcnt vmcnt(0)"); e("s_barrier"); e("s_lshl_b32 s6, s5, 2")
e("v_mov_b32 v26, 1"); e("v_mov_b32 v27, 0")
e("v_cmp_eq_u32 vcc, 0, v0"); e("s_and_saveexec_b64 s[28:29], vcc"); e("s_cbranch_execz k6_na")
e("buffer_atomic_add v26, v27, s[20:23], s6 offen sc0"); e("s_waitcnt vmcnt(0)"); e("ds_write_b32 v27, v26"); e("s_waitcnt lgkmcnt(0)")
e("k6_na:"); e("s_or_b64 exec, exec, s[28:29]"); e("s_barrier")
e("ds_read_b32 v26, v27"); e("s_waitcnt lgkmcnt(0)"); e("v_readfirstlane_b32 s7, v26"); e("s_cmp_lg_u32 s7, 8"); e("s_cbranch_scc1 k6_kernel_end")
e("s_lshl_b32 s29, s5, 8"); e(f"s_add_u32 s28, s29, {WS_DP}")
for rc in range(9): e(f"v_add_u32 v205, {rc*18432}, v204"); e(f"buffer_load_dwordx2 v[{30+2*rc}:{31+2*rc}], v205, s[24:27], s28 offen sc1")
e(f"s_add_u32 s28, s29, {WS_X1}"); e("buffer_load_dwordx2 v[50:51], v204, s[24:27], s28 offen")
e("v_mul_u32_u24 v206, 0x3600, v200"); e("v_lshl_add_u32 v206, v201, 3, v206"); e(f"s_add_u32 s28, s29, {5*2304}"); e("buffer_load_dwordx2 v[52:53], v206, s[24:27], s28 offen")
e("s_waitcnt vmcnt(0)")
for rc in range(1,9): e(f"v_add_f32 v30, v30, v{30+2*rc}"); e(f"v_add_f32 v31, v31, v{31+2*rc}")
bfround(30,209); bfround(31,209); e("v_fma_f32 v30, v30, v52, v50"); e("v_fma_f32 v31, v31, v53, v51"); e("v_cvt_pk_bf16_f32 v30, v30, v31")
e("v_lshrrev_b32 v204, 1, v204"); e("s_lshr_b32 s29, s29, 1"); e("buffer_store_dword v30, v204, s[16:19], s29 offen")
tail("k6_kernel")
ks=[("k1_kernel",54,81920),("k2_kernel",64,81920),("k3_kernel",512,20480),("k4_kernel",72,81920),("k5_kernel",72,81920),("k6_kernel",81,81920)]
hdr=open("adaLN_cond__gqa_block_cached__geglu_ffn__decode.s.ref").read().split("\n")
out=[l for l in hdr if l.startswith(";") and "@launch" not in l and "Override" not in l and "grid=ceil" not in l]
for n,g,l in ks: out.append(f"; @launch kernel={n} grid=({g},1,1) block=(256,1,1) lds={l}")
out+=['.amdgcn_target "amdgcn-amd-amdhsa--gfx950"',".text"]+L+['.section .rodata,"a"']
for n,g,l in ks:
    out+=[".p2align 6",f".amdhsa_kernel {n}",".amdhsa_next_free_vgpr 256",".amdhsa_next_free_sgpr 102",".amdhsa_accum_offset 256",".amdhsa_group_segment_fixed_size 0",".amdhsa_kernarg_size 112",".amdhsa_user_sgpr_count 2",".amdhsa_user_sgpr_kernarg_segment_ptr 1",".amdhsa_system_sgpr_workgroup_id_x 1",".end_amdhsa_kernel"]
open("adaLN_cond__gqa_block_cached__geglu_ffn__decode.s","w").write("\n".join(out)+"\n")
```
